```python
import torch

def _softmax(x, axis=-1):
    return torch.softmax(x, dim=axis)

def _gelu(x):
    return torch.nn.functional.gelu(x, approximate='tanh')

def _silu(x):
    return torch.nn.functional.silu(x)

def _sigmoid(x):
    return torch.sigmoid(x)

def _layernorm(x, axis=-1, eps=1e-05):
    m = x.mean(dim=axis, keepdim=True)
    v = x.var(dim=axis, keepdim=True, unbiased=False)
    return (x - m) / torch.sqrt(v + eps)

def _scatter_add(tgt, idx, src, axis=0):
    return tgt.clone().index_add_(axis, idx, src)

def _segment_sum(src, seg, n):
    out = torch.zeros((n,) + src.shape[1:], dtype=src.dtype)
    return out.index_add_(0, seg, src)

def _pad(x, pw):
    flat = tuple((v for pair in reversed(pw) for v in pair))
    return torch.nn.functional.pad(x, flat)
kernel_name = 'standalone__conformer_conv_module__speech'

def setup_inputs():

    _w = lambda a: (lambda t: t.to(torch.bfloat16) if t.is_floating_point() else t)(torch.as_tensor(a))
    B, T, D, K = (2, 16000, 256, 3)
    return {'x': _w((lambda *s: torch.randn(*s, dtype=torch.bfloat16) * 0.2)(B, T, D)), 'w_pw1': _w((lambda *s: torch.randn(*s, dtype=torch.bfloat16) * 0.2)(D, 2 * D)), 'dw': _w((lambda *s: torch.randn(*s, dtype=torch.bfloat16) * 0.2)(K, D)), 'w_pw2': _w((lambda *s: torch.randn(*s, dtype=torch.bfloat16) * 0.05)(D, D))}

def reference(x, w_pw1, dw, w_pw2):
    B, T, D = x.shape
    K = dw.shape[0]
    h = x @ w_pw1
    a, b = (h[..., :D].clone(), h[..., D:].clone())
    h = a * _sigmoid(b)
    pad = K // 2
    hp = _pad(h, ((0, 0), (pad, pad), (0, 0)))
    out = torch.zeros_like(h)
    for i in range(K):
        out = out + hp[:, i:i + T, :] * dw[i][None, None, :]
    return _silu(out) @ w_pw2
```

```python
import sys
KN = "standalone__conformer_conv_module__speech_kernel"
HEAD = open("standalone__conformer_conv_module__speech.s.ref").read().split("; Override launch")[0]

XT = 16896
XB = 0
SB = 4 * XT
WB = SB + 2 * 16384
W1A, W1B, W2 = 0, 64, 128
A, Bq = 192, 208
F = 224
IW, CP, CN, CC, C0, C1 = 240, 241, 242, 243, 244, 245
XRD, SWR, SWR2, SRD_, VST, VSTEP = 246, 247, 248, 249, 250, 251
T0, T1, T2, T3 = 252, 253, 254, 255
sX, sW1, sW2, sO, sDW = 8, 12, 16, 20, 24
sWV, sC, sM, sWST, sTMP, sSLOW, sCOL = 3, 28, 29, 30, 31, 32, 33

class E:
    def __init__(s):
        s.l = []; s.vm = []; s.lg = []
    def __call__(s, t): s.l.append(t)
    def vmem(s, t, tag=None): s.l.append(t); s.vm.append(tag)
    def lds(s, t, tag=None): s.l.append(t); s.lg.append(tag)
    def _n(s, q, tag):
        idx = [i for i, x in enumerate(q) if x == tag]
        if not idx: return None
        return len(q) - 1 - idx[-1]
    def wait(s, vm=None, lg=None):
        p = []
        if vm is not None:
            n = 0 if vm == "all" else s._n(s.vm, vm)
            if n is not None and s.vm:
                assert n <= 63
                p.append(f"vmcnt({n})"); s.vm = s.vm[len(s.vm) - n:]
        if lg is not None:
            n = 0 if lg == "all" else s._n(s.lg, lg)
            if n is not None and s.lg:
                n = min(n, 15)
                p.append(f"lgkmcnt({n})"); s.lg = s.lg[len(s.lg) - n:]
        if p: s.l.append("s_waitcnt " + " ".join(p))
    def fork(s):
        e = E(); e.vm = list(s.vm); e.lg = list(s.lg); return e
    def text(s): return "\n".join(s.l) + "\n"

def vr(a, n): return f"v[{a}:{a+n-1}]"
def mfma(e, d, a, b, first):
    c = "0" if first else vr(d, 16)
    e(f"v_mfma_f32_32x32x16_bf16 {vr(d,16)}, {vr(a,4)}, {vr(b,4)}, {c}")

def srd(e, s, lo, hi, n):
    e(f"s_mov_b32 s{s}, {lo}"); e(f"s_mov_b32 s{s+1}, {hi}"); e(f"s_mov_b32 s{s+2}, {n}"); e(f"s_mov_b32 s{s+3}, 0x20000")

def stamp(e, cfg, i):
    if cfg.get("stamps"):
        e(f"s_memtime s[{60+2*i}:{61+2*i}]")

def setup(e, cfg):
    e("s_cmp_ge_u32 s2, 256"); e("s_cbranch_scc1 L_end")
    if cfg.get("stamps"):
        e("s_memrealtime s[56:57]")
    stamp(e, cfg, 0)
    e("s_load_dwordx8 s[36:43], s[0:1], 0")
    e("s_load_dwordx2 s[44:45], s[0:1], 32")
    if cfg.get("stamps"): e(f"s_load_dwordx2 s[46:47], s[0:1], {cfg['stamps']}")
    e(f"v_lshrrev_b32 v{T0}, 6, v0")
    e(f"v_and_b32 v{T3}, 63, v0")
    e(f"v_readfirstlane_b32 s{sWV}, v{T0}")
    e(f"s_and_b32 s4, s2, 127"); e("s_mul_i32 s4, s4, 125"); e(f"s_add_u32 s{sM}, s4, 63")
    e("s_lshr_b32 s5, s2, 7"); e("s_mul_i32 s5, s5, 8192000")
    e(f"s_mov_b32 s{sC}, 0xbfb8aa3b")
    e(f"s_lshl_b32 s{sCOL}, s{sWV}, 6")
    e(f"s_and_b32 s6, s{sWV}, 1"); e(f"s_lshr_b32 s7, s{sWV}, 1"); e("s_lshl_b32 s7, s7, 2")
    e(f"s_add_u32 s34, s{sM}, s7"); e(f"s_sub_u32 s35, s{sM}, s7"); e("s_sub_u32 s35, s35, 1")
    e("s_cmp_eq_u32 s6, 1"); e("s_cselect_b32 s34, s34, s35"); e("s_cselect_b32 s6, 1, -1"); e("s_lshl_b32 s6, s6, 9")
    e("s_lshl_b32 s34, s34, 9")
    e(f"v_lshrrev_b32 v{T0}, 5, v{T3}")
    e(f"v_and_b32 v{T1}, 31, v{T3}")
    e(f"v_xor_b32 v{T2}, v{T1}, v{T0}")
    e(f"v_lshlrev_b32 v{T2}, 4, v{T2}")
    e(f"v_mad_i32_i24 v{T2}, v{T0}, s6, v{T2}")
    e(f"v_add_u32 v{VSTEP}, s34, v{T2}")
    e(f"v_lshrrev_b32 v{T2}, 2, v{T3}"); e(f"v_and_b32 v{C1}, 3, v{T3}"); e(f"v_lshlrev_b32 v{C1}, 4, v{C1}")
    e(f"v_lshl_add_u32 v{C0}, v{T2}, 10, v{C1}"); e(f"v_lshl_add_u32 v{C1}, v{T2}, 9, v{C1}")
    e("s_waitcnt lgkmcnt(0)")
    e("s_add_u32 s36, s36, s5"); e("s_addc_u32 s37, s37, 0")
    e("s_add_u32 s44, s44, s5"); e("s_addc_u32 s45, s45, 0")
    srd(e, sX, "s36", "s37", 8192000); srd(e, sW1, "s38", "s39", 262144)
    srd(e, sW2, "s42", "s43", 131072); srd(e, sO, "s44", "s45", 8192000); srd(e, sDW, "s40", "s41", 1536)

def x_dma(e, j):
    for tt in range(2):
        e(f"s_mul_i32 s{sTMP}, s6, {16*j + 2*tt}")
        e(f"v_add_u32 v{T2}, s{sTMP}, v{VSTEP}")
        e(f"s_mul_i32 s{sTMP}, s{sWV}, 2112")
        e(f"s_add_u32 m0, s{sTMP}, {XB + j*XT + tt*1056}")
        e("s_nop 0")
        e.vmem(f"buffer_load_dwordx4 v{T2}, s[{sX}:{sX+3}], 0 offen lds", f"x{j}")

def w_piece(p):
    if p < 32:
        ks, ab = p // 2, p % 2
        return sW1, C0, ks * 16384 + ab * 512, (W1B if ab else W1A) + 4 * ks, SWR, 256
    ks = p - 32
    return sW2, C1, ks * 8192, W2 + 4 * ks, SWR2, 512

def w_dma(e, p, slot):
    s, va, so, _, _, _ = w_piece(p)
    e(f"s_add_u32 s{sTMP}, s{sCOL}, {so}")
    e(f"s_add_u32 m0, s{sWST}, {slot*1024}")
    e("s_nop 0")
    e.vmem(f"buffer_load_dwordx4 v{va}, s[{s}:{s+3}], s{sTMP} offen lds", f"w{p}")

def w_read(e, p, slot):
    _, _, _, d, ra, o2 = w_piece(p)
    e.lds(f"ds_read_b64_tr_b16 {vr(d,2)}, v{ra} offset:{slot*1024}", f"wr{p}")
    e.lds(f"ds_read_b64_tr_b16 {vr(d+2,2)}, v{ra} offset:{slot*1024+o2}", f"wr{p}")

def addr_w(e, nslots):
    e(f"s_mul_i32 s{sWST}, s{sWV}, {nslots*1024}"); e(f"s_add_u32 s{sWST}, s{sWST}, {WB}")
    e(f"v_bfe_u32 v{T0}, v{T3}, 2, 2")
    e(f"v_lshrrev_b32 v{T1}, 5, v{T3}")
    e(f"v_bfe_u32 v{T2}, v{T3}, 4, 1")
    e(f"v_lshlrev_b32 v{T2}, 5, v{T2}")
    e(f"v_lshl_add_u32 v{T2}, v{T0}, 6, v{T2}")
    e(f"v_add_u32 v{T2}, s{sWST}, v{T2}")
    e(f"v_lshl_add_u32 v{SWR}, v{T1}, 9, v{T2}")
    e(f"v_lshl_add_u32 v{SWR2}, v{T1}, 8, v{T2}")
    e(f"v_and_b32 v{T0}, 3, v{T3}")
    e(f"v_lshl_add_u32 v{SWR}, v{T0}, 3, v{SWR}")
    e(f"v_and_b32 v{T0}, 1, v{T3}")
    e(f"v_lshl_add_u32 v{SWR2}, v{T0}, 4, v{SWR2}")
    e(f"v_bfe_u32 v{T0}, v{T3}, 1, 1")
    e(f"v_lshl_add_u32 v{SWR2}, v{T0}, 3, v{SWR2}")

def addr_x(e):
    e(f"v_bfe_u32 v{T0}, v{T3}, 1, 4")
    e(f"v_mul_u32_u24 v{XRD}, 1056, v{T0}")
    e(f"v_and_b32 v{T0}, 1, v{T3}")
    e(f"v_lshl_add_u32 v{XRD}, v{T0}, 9, v{XRD}")
    e(f"v_lshrrev_b32 v{T1}, 5, v{T3}")
    e(f"v_xor_b32 v{T0}, v{T0}, v{T1}")
    e(f"v_lshl_add_u32 v{XRD}, v{T0}, 4, v{XRD}")

def addr_main(e):
    e(f"v_and_b32 v{T0}, 31, v{T3}")
    e(f"v_lshrrev_b32 v{T1}, 5, v{T3}")
    e(f"s_lshl_b32 s{sTMP}, s{sWV}, 11"); e(f"s_add_u32 s{sTMP}, s{sTMP}, {SB}")
    e(f"v_lshl_add_u32 v{SWR}, v{T0}, 6, s{sTMP}")
    e(f"v_bfe_u32 v{T2}, v{T3}, 1, 2")
    e(f"v_lshlrev_b32 v{SWR2}, 1, v{T1}")
    e(f"v_xor_b32 v{T2}, v{T2}, v{SWR2}")
    e(f"v_lshl_add_u32 v{SWR}, v{T2}, 4, v{SWR}")
    e(f"v_xor_b32 v{SWR2}, 16, v{SWR}")
    e(f"v_bfe_u32 v{T0}, v{T3}, 2, 2")
    e(f"v_lshl_add_u32 v{T0}, v{T1}, 2, v{T0}")
    e(f"v_lshlrev_b32 v{SRD_}, 6, v{T0}")
    e(f"v_lshrrev_b32 v{T0}, 1, v{T0}")
    e(f"v_bfe_u32 v{T2}, v{T3}, 4, 1")
    e(f"v_lshlrev_b32 v{T2}, 1, v{T2}")
    e(f"v_xor_b32 v{T0}, v{T0}, v{T2}")
    e(f"v_bfe_u32 v{T2}, v{T3}, 1, 1")
    e(f"v_xor_b32 v{T0}, v{T0}, v{T2}")
    e(f"v_lshl_add_u32 v{SRD_}, v{T0}, 4, v{SRD_}")
    e(f"v_and_b32 v{T0}, 1, v{T3}")
    e(f"v_lshl_add_u32 v{SRD_}, v{T0}, 3, v{SRD_}")
    e(f"v_add_u32 v{SRD_}, {SB}, v{SRD_}")
    e(f"v_bfe_u32 v{T2}, v{T3}, 4, 1")
    e(f"v_and_b32 v{T0}, 15, v{T3}")
    e(f"v_lshl_add_u32 v{VSTEP}, v{T2}, 1, -1")
    e(f"v_mul_i32_i24 v{T0}, v{T0}, v{VSTEP}")
    e(f"v_sub_u32 v{T0}, v{T0}, v{T2}")
    e(f"v_add_u32 v{T0}, s{sM}, v{T0}")
    e(f"v_lshl_add_u32 v{VST}, v{T0}, 9, s{sCOL}")
    e(f"v_lshl_add_u32 v{VST}, v{T1}, 4, v{VST}")
    e(f"v_lshlrev_b32 v{VSTEP}, 13, v{VSTEP}")

def dw_load(e):
    e(f"v_and_b32 v{T0}, 31, v{T3}"); e(f"v_lshlrev_b32 v{T0}, 1, v{T0}")
    for i, r in enumerate((CP, CC, CN)):
        e.vmem(f"buffer_load_ushort v{r}, v{T0}, s[{sDW}:{sDW+3}], s{sCOL} offen offset:{512*i}", "dw")

def dw_prep(e):
    e.wait(vm="dw")
    for r in (CP, CC, CN):
        e(f"v_lshlrev_b32 v{r}, 16, v{r}")
    e(f"v_cmp_gt_u32 vcc, 32, v{T3}")
    for r in (CP, CC, CN):
        e(f"v_mul_f32 v{r}, s{sC}, v{r}")
    e(f"v_cndmask_b32 v{T0}, v{CP}, v{CN}, vcc")
    e(f"v_cndmask_b32 v{CN}, v{CN}, v{CP}, vcc")
    e(f"v_mov_b32 v{CP}, v{T0}")
    e(f"v_max_f32 v{T0}, abs(v{CP}), abs(v{CN})")
    e(f"v_mul_f32 v{T0}, 0x30800000, v{T0}")
    e(f"v_max_f32 v{T0}, 0x2b800000, v{T0}")
    e(f"v_cmp_nge_f32 s[48:49], abs(v{CC}), v{T0}")
    e(f"v_mov_b32 v{T1}, 0x53800000")
    e(f"v_cmp_nle_f32 s[50:51], abs(v{CC}), v{T1}")
    e(f"v_rcp_f32 v{T0}, v{CC}")
    e(f"v_mov_b32 v{IW}, 1.0")
    e("s_nop 2")
    e("s_or_b64 s[48:49], s[48:49], s[50:51]")
    e(f"s_cselect_b32 s{sSLOW}, 1, 0")
    e("s_cbranch_scc1 L_dwdone%s" % e.sfx)
    e(f"v_mov_b32 v{IW}, v{T0}")
    e(f"v_mul_f32 v{CP}, v{CP}, v{T0}")
    e(f"v_mul_f32 v{CN}, v{CN}, v{T0}")
    e("L_dwdone%s:" % e.sfx)

def x_read(e, j, ks):
    e.lds(f"ds_read_b128 {vr(F+4*(ks%4),4)}, v{XRD} offset:{XB + j*XT + 32*ks}", f"xf{ks}")

def G1(e, j, pre=None):
    for ks in range(3): x_read(e, j, ks)
    for ks in range(16):
        if ks + 3 < 16: x_read(e, j, ks + 3)
        if pre: pre(ks)
        e.wait(lg=f"xf{ks}")
        f = F + 4 * (ks % 4)
        mfma(e, Bq, f, W1B + 4 * ks, ks == 0)
        mfma(e, A, f, W1A + 4 * ks, ks == 0)

def s_read(e, j, ks):
    f = F + 4 * (ks % 4); o = (j % 2) * 16384 + ks * 1024
    e.lds(f"ds_read_b64_tr_b16 {vr(f,2)}, v{SRD_} offset:{o}", f"sf{ks}")
    e.lds(f"ds_read_b64_tr_b16 {vr(f+2,2)}, v{SRD_} offset:{o+512}", f"sf{ks}")

def G2(e, j):
    for ks in range(3): s_read(e, j, ks)
    for ks in range(16):
        if ks + 3 < 16: s_read(e, j, ks + 3)
        e.wait(lg=f"sf{ks}")
        mfma(e, A, W2 + 4 * ks, F + 4 * (ks % 4), ks == 0)
    e("s_nop 11")
    for i in range(8):
        e(f"v_cvt_pk_bf16_f32 v{A+i}, v{A+2*i}, v{A+2*i+1}")
    if j == 0: e("s_mov_b32 exec_lo, 0xfffefffe"); e("s_mov_b32 exec_hi, 0xfffefffe")
    if j == 3: e("s_mov_b32 exec_lo, 0x7fffffff"); e("s_mov_b32 exec_hi, 0x7fffffff")
    e.vmem(f"buffer_store_dwordx4 {vr(A,4)}, v{VST}, s[{sO}:{sO+3}], 0 offen", "st")
    e.vmem(f"buffer_store_dwordx4 {vr(A+4,4)}, v{VST}, s[{sO}:{sO+3}], 0 offen offset:32", "st")
    if j in (0, 3): e("s_mov_b64 exec, -1")
    if j < 3: e(f"v_add_u32 v{VST}, v{VST}, v{VSTEP}")
    e("s_nop 1")

def V(e, j):
    R = range(16)
    e("s_nop 7")
    for r in R: e(f"v_mul_f32 v{Bq+r}, s{sC}, v{Bq+r}")
    for r in R: e(f"v_exp_f32 v{Bq+r}, v{Bq+r}")
    for r in R: e(f"v_fma_f32 v{Bq+r}, v{Bq+r}, v{IW}, v{IW}")
    for r in R: e(f"v_rcp_f32 v{Bq+r}, v{Bq+r}")
    for r in R: e(f"v_mul_f32 v{A+r}, v{A+r}, v{Bq+r}")
    if j == 0:
        e(f"v_mov_b32 v{C0}, v{A}"); e(f"v_mov_b32 v{C1}, v{A}")
        e(f"v_cmp_gt_u32 vcc, 32, v{T3}"); e("s_nop 1")
        e(f"v_permlane32_swap_b32 v{C0}, v{C1}"); e("s_nop 1")
        e(f"v_cndmask_b32 v{C1}, v{C0}, v{C1}, vcc")
    g = lambda r: A + r if r >= 0 else (C1 if r == -1 else C0)
    l = f"{e.sfx}_{j}"
    e(f"s_cmp_eq_u32 s{sSLOW}, 0"); e(f"s_cbranch_scc1 L_fast{l}")
    for r in R: e(f"v_mul_f32 v{Bq+r}, v{CC}, v{g(r-1)}")
    for r in R: e(f"v_fmac_f32 v{Bq+r}, v{CN}, v{g(r)}")
    e(f"s_branch L_join{l}")
    e(f"L_fast{l}:")
    for r in R: e(f"v_fma_f32 v{Bq+r}, v{CN}, v{g(r)}, v{g(r-1)}")
    e(f"L_join{l}:")
    for r in R: e(f"v_fmac_f32 v{Bq+r}, v{CP}, v{g(r-2)}")
    if j < 3:
        e(f"v_mov_b32 v{C0}, v{A+14}"); e(f"v_mov_b32 v{C1}, v{A+15}")
    for r in R: e(f"v_exp_f32 v{A+r}, v{Bq+r}")
    for r in R: e(f"v_fma_f32 v{A+r}, v{A+r}, s{sC}, s{sC}")
    for r in R: e(f"v_rcp_f32 v{A+r}, v{A+r}")
    for r in R: e(f"v_mul_f32 v{Bq+r}, v{Bq+r}, v{A+r}")
    for i in range(8): e(f"v_cvt_pk_bf16_f32 v{A+i}, v{Bq+2*i}, v{Bq+2*i+1}")
    o = (j % 2) * 16384
    e.lds(f"ds_write_b128 v{SWR}, {vr(A,4)} offset:{o}", "sw")
    e.lds(f"ds_write_b128 v{SWR2}, {vr(A+4,4)} offset:{o}", "sw")
    e.wait(lg="all")

def finish(e, cfg, n):
    if cfg.get("stamps"):
        e("s_waitcnt vmcnt(0)")
        stamp(e, cfg, n)
        e("s_memrealtime s[58:59]"); e("s_waitcnt lgkmcnt(0)")
        if cfg["stamps"] == 48:
            e(f"s_lshl_b32 s4, s2, 3"); e(f"s_add_u32 s4, s4, s{sWV}"); e("s_lshl_b32 s4, s4, 6")
        else:
            e(f"s_cmp_lg_u32 s2, {cfg.get('dbgwg', 0)}"); e("s_cbranch_scc1 L_end")
            e(f"s_cmp_lg_u32 s{sWV}, {cfg.get('dbgwave', 0)}"); e("s_cbranch_scc1 L_end"); e("s_mov_b32 s4, 0")
        e("v_mov_b32 v0, s4")
        e("v_mov_b32 v1, s56"); e("global_store_dword v0, v1, s[46:47]")
        e("v_mov_b32 v1, s58"); e("global_store_dword v0, v1, s[46:47] offset:4")
        for i in range(1, n + 1):
            e(f"s_sub_u32 s4, s{60+2*i}, s60"); e("v_mov_b32 v1, s4"); e(f"global_store_dword v0, v1, s[46:47] offset:{4+4*i}")
    e("s_endpgm")

def wrap(body, lds=163840):
    return (HEAD + f"; @launch grid=(256,1,1) block=(512,1,1) lds={lds}\n"
      + f'.amdgcn_target "amdgcn-amd-amdhsa--gfx950"\n.text\n.globl {KN}\n.p2align 8\n.type {KN},@function\n{KN}:\n'
      + body + "L_end:\ns_endpgm\n"
      + f'.section .rodata,"a"\n.p2align 6\n.amdhsa_kernel {KN}\n  .amdhsa_next_free_vgpr 256\n  .amdhsa_next_free_sgpr 102\n'
      + "  .amdhsa_accum_offset 256\n  .amdhsa_group_segment_fixed_size 0\n  .amdhsa_kernarg_size 56\n  .amdhsa_user_sgpr_count 2\n"
      + "  .amdhsa_user_sgpr_kernarg_segment_ptr 1\n  .amdhsa_system_sgpr_workgroup_id_x 1\n.end_amdhsa_kernel\n")

def v1(cfg):
    e = E(); e.sfx = ""
    NS = 7
    setup(e, cfg)
    x_dma(e, 0)
    addr_w(e, NS)
    for p in range(NS): w_dma(e, p, p)
    dw_load(e)
    addr_x(e)
    stamp(e, cfg, 1)
    xat = {8: 1, 20: 2, 32: 3}
    for p in range(48):
        e.wait(vm=f"w{p}")
        w_read(e, p, p % NS)
        if p >= 1 and p - 1 + NS < 48:
            e.wait(lg=f"wr{p-1}")
            w_dma(e, p - 1 + NS, (p - 1) % NS)
        if p in xat: x_dma(e, xat[p])
        if p == 0: stamp(e, cfg, 2)
    dw_prep(e)
    e.wait(vm="all", lg="all")
    addr_main(e)
    stamp(e, cfg, 3)
    e("s_barrier")
    stamp(e, cfg, 4)
    e(f"s_cmp_ge_u32 s{sWV}, 4"); e("s_cbranch_scc1 L_Q")
    P = e.fork(); P.sfx = "P"; Q = e.fork(); Q.sfx = "Q"
    schedP = [["G1 0"], ["V 0"], ["G1 1"], ["V 1"], ["G2 0", "G1 2"], ["V 2"], ["G2 1", "G1 3"], ["V 3"], ["G2 2"], ["G2 3"]]
    schedQ = [[], ["G1 0"], ["V 0"], ["G2 0", "G1 1"], ["V 1"], ["G2 1", "G1 2"], ["V 2"], ["G2 2", "G1 3"], ["V 3"], ["G2 3"]]
    for w, sched in ((P, schedP), (Q, schedQ)):
        for si, slot in enumerate(sched):
            for op in slot:
                n, j = op.split(); j = int(j)
                if cfg.get("prio"): w(f"s_setprio {0 if n == 'V' else 1}")
                {"G1": G1, "G2": G2, "V": V}[n](w, j)
            if si < 9:
                w("s_barrier")
                stamp(w, cfg, 5 + si)
        finish(w, cfg, 14)
    return wrap(e.text() + P.text() + "L_Q:\n" + Q.text())

if __name__ == "__main__":
    cfg = dict(kv.split("=") for kv in sys.argv[3:])
    cfg = {k: int(v) for k, v in cfg.items()}
    open(sys.argv[2], "w").write(globals()[sys.argv[1]](cfg))
```

```python
import sys
from gen import E, vr, mfma, srd, stamp, finish, wrap
KB = 1024
XT = 16896
ACC = [128, 160, 192]
F = 224
IW, CP, CN, C0, C1 = 240, 241, 242, 243, 244
XRD, SWR, SWR2, SRD_, WRD, WSRC = 245, 246, 247, 248, 249, 250
XU, XL = 251, 252
T0, T1, LANE = 253, 254, 255
OWR, ORD = XRD, WSRC
sX, sW1, sW2, sO, sDW = 8, 12, 16, 20, 24
sWV, sC, sM, sRING, sTMP, sSLOW, sCOL, sW4, sXB = 3, 28, 29, 30, 31, 32, 33, 34, 35

class L:
    pass

def layout(cfg):
    l = L()
    l.X = [0, XT, 2 * XT, 3 * XT]
    b = 4 * XT
    l.S = [b, b + 16 * KB, b + 32 * KB, b + 48 * KB]
    l.end = b + 64 * KB
    l.ND = 7
    l.ringQ = l.end
    l.ringP = l.S[2]
    l.OUT = l.X[2]
    return l

def run(e, st):
    for _, f in st: f()

def merge(*sts):
    tot = [sum(c for c, _ in s) or 1 for s in sts]
    idx = [0] * len(sts); acc = [0.0] * len(sts); out = []
    while True:
        c = [(acc[i] / tot[i], i) for i in range(len(sts)) if idx[i] < len(sts[i])]
        if not c: return out
        i = min(c)[1]
        out.append(sts[i][idx[i]]); acc[i] += sts[i][idx[i]][0]; idx[i] += 1

def setup(e, cfg):
    e("s_cmp_ge_u32 s2, 256"); e("s_cbranch_scc1 L_end")
    if cfg.get("stamps"): e("s_memrealtime s[56:57]")
    stamp(e, cfg, 0)
    e("s_load_dwordx8 s[36:43], s[0:1], 0")
    e("s_load_dwordx2 s[44:45], s[0:1], 32")
    if cfg.get("stamps"): e(f"s_load_dwordx2 s[46:47], s[0:1], {cfg['stamps']}")
    e(f"v_lshrrev_b32 v{T0}, 6, v0")
    e(f"v_and_b32 v{LANE}, 63, v0")
    e(f"v_readfirstlane_b32 s{sWV}, v{T0}")
    e("s_and_b32 s4, s2, 127"); e("s_mul_i32 s4, s4, 125"); e(f"s_add_u32 s{sM}, s4, 63")
    e("s_lshr_b32 s5, s2, 7"); e("s_mul_i32 s5, s5, 8192000")
    e(f"s_mov_b32 s{sC}, 0xbfb8aa3b")
    e(f"s_lshl_b32 s{sCOL}, s{sWV}, 6"); e(f"s_and_b32 s{sW4}, s{sWV}, 3")
    for s, n in ((sX, 8192000), (sW1, 262144), (sW2, 131072), (sO, 8192000), (sDW, 1536)):
        e(f"s_mov_b32 s{s+2}, {n}"); e(f"s_mov_b32 s{s+3}, 0x20000")
    e(f"v_lshrrev_b32 v{T0}, 2, v{LANE}"); e(f"v_and_b32 v{T1}, 3, v{LANE}"); e(f"v_lshlrev_b32 v{T1}, 4, v{T1}")
    e(f"v_lshl_add_u32 v{WSRC}, v{T0}, 10, v{T1}")

def srds(e):
    e("s_waitcnt lgkmcnt(0)")
    e(f"s_add_u32 s{sX}, s36, s5"); e(f"s_addc_u32 s{sX+1}, s37, 0")
    e(f"s_mov_b64 s[{sW1}:{sW1+1}], s[38:39]"); e(f"s_mov_b64 s[{sW2}:{sW2+1}], s[42:43]")
    e(f"s_mov_b64 s[{sDW}:{sDW+1}], s[40:41]")
    e(f"s_add_u32 s{sO}, s44, s5"); e(f"s_addc_u32 s{sO+1}, s45, 0")

def addr_xsrc(e):
    e(f"v_lshrrev_b32 v{T0}, 5, v{LANE}"); e(f"v_and_b32 v{T1}, 31, v{LANE}")
    e(f"v_xor_b32 v{T1}, v{T1}, v{T0}"); e(f"v_lshlrev_b32 v{T1}, 4, v{T1}")
    e(f"s_lshl_b32 s4, s{sW4}, 2"); e(f"s_add_u32 s6, s{sM}, s4"); e(f"s_sub_u32 s7, s{sM}, s4"); e("s_sub_u32 s7, s7, 1")
    e(f"v_add_u32 v{XU}, s6, v{T0}"); e(f"v_sub_u32 v{XL}, s7, v{T0}")
    e(f"v_lshl_add_u32 v{XU}, v{XU}, 9, v{T1}"); e(f"v_lshl_add_u32 v{XL}, v{XL}, 9, v{T1}")
    e(f"s_mul_i32 s{sXB}, s{sW4}, 4224")

def x_dma(e, l, j, fl="nt"):
    for tt in range(4):
        o = (16 * j + 2 * (tt & 1)) * 512
        e(f"s_add_u32 m0, s{sXB}, {l.X[j] + tt*1056}")
        if tt < 2: e(f"v_subrev_u32 v{T0}, {o}, v{XL}")
        else: e(f"v_add_u32 v{T0}, {o}, v{XU}")
        e.vmem(f"buffer_load_dwordx4 v{T0}, s[{sX}:{sX+3}], 0 offen {fl} lds", f"x{j}")

def prefetch(e):
    e(f"v_lshlrev_b32 v{T0}, 7, v{LANE}")
    e("s_lshr_b32 s4, s2, 3"); e("s_lshl_b32 s4, s4, 2"); e(f"s_add_u32 s4, s4, s{sW4}")
    e("s_lshl_b32 s6, s4, 11"); e("s_lshl_b32 s7, s4, 10")
    e("s_mov_b64 exec, 0xffff")
    e.vmem(f"buffer_load_dword v{C0}, v{T0}, s[{sW1}:{sW1+3}], s6 offen", "pf")
    e("s_mov_b64 exec, 0xff")
    e.vmem(f"buffer_load_dword v{C1}, v{T0}, s[{sW2}:{sW2+3}], s7 offen", "pf")
    e("s_mov_b64 exec, -1")

def addr_w1(e, base, nd):
    e(f"s_mul_i32 s{sRING}, s{sW4}, {nd*KB}"); e(f"s_add_u32 s{sRING}, s{sRING}, {base}")
    e(f"v_bfe_u32 v{T0}, v{LANE}, 2, 2"); e(f"v_lshlrev_b32 v{WRD}, 6, v{T0}")
    e(f"v_bfe_u32 v{T0}, v{LANE}, 4, 1"); e(f"v_lshl_add_u32 v{WRD}, v{T0}, 5, v{WRD}")
    e(f"v_lshrrev_b32 v{T0}, 5, v{LANE}"); e(f"v_lshl_add_u32 v{WRD}, v{T0}, 9, v{WRD}")
    e(f"v_and_b32 v{T0}, 3, v{LANE}"); e(f"v_lshl_add_u32 v{WRD}, v{T0}, 3, v{WRD}")
    e(f"v_add_u32 v{WRD}, s{sRING}, v{WRD}")

def addr_w2(e):
    e(f"s_lshl_b32 s{sRING}, s{sW4}, 10"); e(f"s_lshl_b32 s{sCOL}, s{sW4}, 7")
    e(f"v_lshrrev_b32 v{T0}, 2, v{LANE}"); e(f"v_and_b32 v{T1}, 3, v{LANE}"); e(f"v_lshlrev_b32 v{T1}, 4, v{T1}")
    e(f"v_lshl_add_u32 v{WSRC}, v{T0}, 9, v{T1}")
    e(f"v_bfe_u32 v{T0}, v{LANE}, 2, 2"); e(f"v_lshlrev_b32 v{WRD}, 6, v{T0}")
    e(f"v_bfe_u32 v{T0}, v{LANE}, 4, 1"); e(f"v_lshl_add_u32 v{WRD}, v{T0}, 5, v{WRD}")
    e(f"v_lshrrev_b32 v{T0}, 5, v{LANE}"); e(f"v_lshl_add_u32 v{WRD}, v{T0}, 8, v{WRD}")
    e(f"v_and_b32 v{T0}, 1, v{LANE}"); e(f"v_lshl_add_u32 v{WRD}, v{T0}, 4, v{WRD}")
    e(f"v_bfe_u32 v{T0}, v{LANE}, 1, 1"); e(f"v_lshl_add_u32 v{WRD}, v{T0}, 3, v{WRD}")
    e(f"v_add_u32 v{WRD}, s{sRING}, v{WRD}")

def w_dma(e, p, off, w2=False):
    ks, ab = p // 2, p % 2
    so = ks * 8192 + ab * 64 if w2 else ks * 16384 + ab * 512
    s = sW2 if w2 else sW1
    e(f"s_add_u32 m0, s{sRING}, {off}")
    e(f"s_add_u32 s{sTMP}, s{sCOL}, {so}")
    e.vmem(f"buffer_load_dwordx4 v{WSRC}, s[{s}:{s+3}], s{sTMP} offen lds", f"w{p}")

def w_read(e, p, off, w2=False, ra=WRD):
    e.wait(vm=f"w{p}")
    e.lds(f"ds_read_b64_tr_b16 {vr(4*p,2)}, v{ra} offset:{off}", f"wr{p}")
    e.lds(f"ds_read_b64_tr_b16 {vr(4*p+2,2)}, v{ra} offset:{off+(512 if w2 else 256)}", f"wr{p}")

def addr_main(e, l):
    e(f"v_bfe_u32 v{T0}, v{LANE}, 1, 4"); e(f"v_mul_u32_u24 v{XRD}, 1056, v{T0}")
    e(f"v_and_b32 v{T0}, 1, v{LANE}"); e(f"v_lshl_add_u32 v{XRD}, v{T0}, 9, v{XRD}")
    e(f"v_lshrrev_b32 v{T1}, 5, v{LANE}"); e(f"v_xor_b32 v{T0}, v{T0}, v{T1}")
    e(f"v_lshl_add_u32 v{XRD}, v{T0}, 4, v{XRD}")
    e(f"s_lshl_b32 s{sTMP}, s{sWV}, 11"); e(f"s_add_u32 s{sTMP}, s{sTMP}, {l.S[0]}")
    e(f"v_and_b32 v{T0}, 31, v{LANE}"); e(f"v_lshl_add_u32 v{SWR}, v{T0}, 6, s{sTMP}")
    e(f"v_bfe_u32 v{T0}, v{LANE}, 1, 2"); e(f"v_lshlrev_b32 v{SWR2}, 1, v{T1}")
    e(f"v_xor_b32 v{T0}, v{T0}, v{SWR2}"); e(f"v_lshl_add_u32 v{SWR}, v{T0}, 4, v{SWR}")
    e(f"v_xor_b32 v{SWR2}, 16, v{SWR}")

def addr_g2(e, l):
    e(f"v_lshrrev_b32 v{T1}, 5, v{LANE}")
    e(f"v_bfe_u32 v{T0}, v{LANE}, 2, 2"); e(f"v_lshl_add_u32 v{T0}, v{T1}, 2, v{T0}")
    e(f"v_lshlrev_b32 v{SRD_}, 6, v{T0}"); e(f"v_lshrrev_b32 v{T0}, 1, v{T0}")
    e(f"v_bfe_u32 v{T1}, v{LANE}, 4, 1"); e(f"v_lshlrev_b32 v{T1}, 1, v{T1}"); e(f"v_xor_b32 v{T0}, v{T0}, v{T1}")
    e(f"v_bfe_u32 v{T1}, v{LANE}, 1, 1"); e(f"v_xor_b32 v{T0}, v{T0}, v{T1}")
    e(f"v_lshl_add_u32 v{SRD_}, v{T0}, 4, v{SRD_}")
    e(f"v_and_b32 v{T0}, 1, v{LANE}"); e(f"v_lshl_add_u32 v{SRD_}, v{T0}, 3, v{SRD_}")
    e(f"v_add_u32 v{SRD_}, {l.S[0]}, v{SRD_}")
    e(f"v_lshrrev_b32 v{T0}, 3, v{LANE}"); e(f"v_and_b32 v{T1}, 7, v{LANE}"); e(f"v_lshlrev_b32 v{T1}, 4, v{T1}")
    e(f"s_lshl_b32 s4, s{sW4}, 7"); e(f"v_add_u32 v{T1}, s4, v{T1}")
    e(f"s_sub_u32 s6, s{sM}, 1"); e(f"s_sub_u32 s7, s{sM}, 56")
    e(f"v_add_u32 v{XU}, s6, v{T0}"); e(f"v_sub_u32 v{XL}, s7, v{T0}")
    e(f"v_lshl_add_u32 v{XU}, v{XU}, 9, v{T1}"); e(f"v_lshl_add_u32 v{XL}, v{XL}, 9, v{T1}")

def addr_out(e, l):
    e(f"s_mul_i32 s4, s{sW4}, 4608"); e(f"s_add_u32 s4, s4, {l.OUT}")
    e(f"v_and_b32 v{T0}, 31, v{LANE}"); e(f"v_mul_u32_u24 v{OWR}, 144, v{T0}")
    e(f"v_lshrrev_b32 v{T0}, 5, v{LANE}"); e(f"v_lshl_add_u32 v{OWR}, v{T0}, 4, v{OWR}"); e(f"v_add_u32 v{OWR}, s4, v{OWR}")
    e(f"v_lshrrev_b32 v{T0}, 3, v{LANE}"); e(f"v_mul_u32_u24 v{ORD}, 144, v{T0}")
    e(f"v_and_b32 v{T0}, 7, v{LANE}"); e(f"v_lshl_add_u32 v{ORD}, v{T0}, 4, v{ORD}"); e(f"v_add_u32 v{ORD}, s4, v{ORD}")

def dw_load(e):
    e(f"v_and_b32 v{T0}, 31, v{LANE}"); e(f"v_lshlrev_b32 v{T0}, 1, v{T0}")
    for i, r in enumerate((CP, IW, CN)):
        e.vmem(f"buffer_load_ushort v{r}, v{T0}, s[{sDW}:{sDW+3}], s{sCOL} offen offset:{512*i}", "dw")

def dw_prep(e):
    e.wait(vm="dw")
    for r in (CP, IW, CN): e(f"v_lshlrev_b32 v{r}, 16, v{r}")
    e(f"v_cmp_gt_u32 vcc, 32, v{LANE}")
    for r in (CP, IW, CN): e(f"v_mul_f32 v{r}, s{sC}, v{r}")
    e(f"v_cndmask_b32 v{T0}, v{CP}, v{CN}, vcc"); e(f"v_cndmask_b32 v{CN}, v{CN}, v{CP}, vcc"); e(f"v_mov_b32 v{CP}, v{T0}")
    e(f"v_max_f32 v{T0}, abs(v{CP}), abs(v{CN})"); e(f"v_mul_f32 v{T0}, 0x30800000, v{T0}"); e(f"v_max_f32 v{T0}, 0x2b800000, v{T0}")
    e(f"v_cmp_nge_f32 s[48:49], abs(v{IW}), v{T0}")
    e(f"v_mov_b32 v{T1}, 0x53800000")
    e(f"v_cmp_nle_f32 s[50:51], abs(v{IW}), v{T1}")
    e(f"v_rcp_f32 v{T0}, v{IW}")
    e("s_nop 3")
    e("s_or_b64 s[48:49], s[48:49], s[50:51]")
    e(f"s_cselect_b32 s{sSLOW}, 1, 0")
    e("s_cselect_b64 exec, 0, -1")
    e(f"v_mov_b32 v{IW}, v{T0}"); e(f"v_mul_f32 v{CP}, v{CP}, v{T0}"); e(f"v_mul_f32 v{CN}, v{CN}, v{T0}")
    e("s_mov_b64 exec, -1")

def G1(e, l, tiles, hook=None, fb=F, nf=4):
    steps = [(ks, j, a) for ks in range(16) for (j, a) in tiles]
    st = []
    def rd(n):
        ks, j, a = steps[n]
        e.lds(f"ds_read_b128 {vr(fb+4*(n%nf),4)}, v{XRD} offset:{l.X[j] + 32*ks}", f"xf{n}")
    st.append((1, lambda: [rd(n) for n in range(nf - 1)]))
    for n, (ks, j, a) in enumerate(steps):
        def f(n=n, ks=ks, j=j, a=a):
            if n + nf - 1 < len(steps): rd(n + nf - 1)
            if hook and n % len(tiles) == 0: hook(ks)
            e.wait(lg=f"xf{n}")
            mfma(e, ACC[a] + 16, fb + 4 * (n % nf), 8 * ks + 4, ks == 0)
        st.append((32, f))
        st.append((32, lambda n=n, ks=ks, a=a: mfma(e, ACC[a], fb + 4 * (n % nf), 8 * ks, ks == 0)))
    return st

def w1_hook(e, nd, after_last=None):
    def hook(ks):
        if ks == 0:
            for p in (0, 1): w_read(e, p, (p % nd) * KB)
        if ks < 15:
            for p in (2 * ks + 2, 2 * ks + 3): w_read(e, p, (p % nd) * KB)
        e.wait(lg=f"wr{2*ks+1}")
        for p in (2 * ks + nd, 2 * ks + 1 + nd):
            if p < 32:
                w_dma(e, p, (p % nd) * KB)
                if p == 31 and after_last: after_last()
    return hook

def V(e, l, j, a):
    A, B = ACC[a], ACC[a] + 16
    R = range(16); st = []
    def op(c, t): st.append((c, lambda: e(t)))
    g = lambda r: A + r if r >= 0 else (C1 if r == -1 else C0)
    lab = f"{e.sfx}{j}"
    def swap(o):
        o(4, f"v_mov_b32 v{C0}, v{A}"); o(4, f"v_mov_b32 v{C1}, v{A}")
        o(12, f"v_cmp_gt_u32 vcc, 32, v{LANE}\ns_nop 1\nv_permlane32_swap_b32 v{C0}, v{C1}\ns_nop 1\nv_cndmask_b32 v{C1}, v{C0}, v{C1}, vcc")
    for r in R: op(4, f"v_mul_f32 v{B+r}, s{sC}, v{B+r}")
    for r in R: op(8, f"v_exp_f32 v{B+r}, v{B+r}")
    op(1, f"s_cmp_lg_u32 s{sSLOW}, 0\ns_cbranch_scc1 L_slow{lab}")
    for r in R: op(4, f"v_fma_f32 v{B+r}, v{B+r}, v{IW}, v{IW}")
    for r in R: op(8, f"v_rcp_f32 v{B+r}, v{B+r}")
    for r in R: op(4, f"v_mul_f32 v{A+r}, v{A+r}, v{B+r}")
    if j == 0: swap(op)
    for r in R: op(4, f"v_fma_f32 v{B+r}, v{CN}, v{g(r)}, v{g(r-1)}")
    op(0, f"L_join{lab}:")
    s = [f"L_slow{lab}:"]
    s += [f"v_add_f32 v{B+r}, 1.0, v{B+r}" for r in R] + [f"v_rcp_f32 v{B+r}, v{B+r}" for r in R]
    s += [f"v_mul_f32 v{A+r}, v{A+r}, v{B+r}" for r in R]
    if j == 0: swap(lambda c, t: s.append(t))
    s += [f"v_mul_f32 v{B+r}, v{IW}, v{g(r-1)}" for r in R] + [f"v_fmac_f32 v{B+r}, v{CN}, v{g(r)}" for r in R]
    s.append(f"s_branch L_join{lab}")
    e.tail += s
    for r in R: op(4, f"v_fmac_f32 v{B+r}, v{CP}, v{g(r-2)}")
    if j < 3: op(4, f"v_mov_b32 v{C0}, v{A+14}"); op(4, f"v_mov_b32 v{C1}, v{A+15}")
    o = l.S[j] - l.S[0]
    for h, wa in ((0, SWR), (8, SWR2)):
        H = range(h, h + 8)
        for r in H: op(8, f"v_exp_f32 v{A+r}, v{B+r}")
        for r in H: op(4, f"v_fma_f32 v{A+r}, v{A+r}, s{sC}, s{sC}")
        for r in H: op(8, f"v_rcp_f32 v{A+r}, v{A+r}")
        for r in H: op(4, f"v_mul_f32 v{B+r}, v{B+r}, v{A+r}")
        for i in range(4): op(4, f"v_cvt_pk_bf16_f32 v{A+h+i}, v{B+h+2*i}, v{B+h+2*i+1}")
        st.append((12, lambda h=h, wa=wa: e.lds(f"ds_write_b128 v{wa}, {vr(A+h,4)} offset:{o}", "sw")))
    return st

def G2(e, l, j, a, hook=None, fb=192, nf=4):
    st = []
    def rd(ks):
        f = fb + 4 * (ks % nf); o = l.S[j] - l.S[0] + ks * KB
        e.lds(f"ds_read_b64_tr_b16 {vr(f,2)}, v{SRD_} offset:{o}", f"sf{ks}")
        e.lds(f"ds_read_b64_tr_b16 {vr(f+2,2)}, v{SRD_} offset:{o+512}", f"sf{ks}")
    st.append((1, lambda: [rd(n) for n in range(nf - 1)]))
    for ks in range(16):
        def f(ks=ks):
            if ks + nf - 1 < 16: rd(ks + nf - 1)
            if hook: hook(ks)
            e.wait(lg=f"sf{ks}")
            mfma(e, ACC[a], 8 * ks, fb + 4 * (ks % nf), ks == 0)
        st.append((32, f))
        st.append((32, lambda ks=ks: mfma(e, ACC[a] + 16, 8 * ks + 4, fb + 4 * (ks % nf), ks == 0)))
    return st

def EPI(e, l, j, a, fl, ob=208, lead=3):
    st = [(lead, lambda: None)]
    A = ACC[a]
    for c in range(4):
        for i in range(4):
            st.append((1, lambda c=c, i=i: e(f"v_cvt_pk_bf16_f32 v{A+8*c+i}, v{A+8*c+2*i}, v{A+8*c+2*i+1}")))
        st.append((1, lambda c=c: e.lds(f"ds_write_b128 v{OWR}, {vr(A+8*c,4)} offset:{32*c}", "ow")))
    for i in range(4):
        st.append((1, lambda i=i: e.lds(f"ds_read_b128 {vr(ob+4*i,4)}, v{ORD} offset:{1152*i}", f"or{i}")))
    st.append((2, lambda: None))
    for i in range(4):
        def f(i=i):
            so = (16 * j + 8 * (i & 1)) * 512 if i >= 2 else (56 - 16 * j - 8 * (i & 1)) * 512
            e(f"s_mov_b32 s{sTMP}, {so}")
            m = None
            if j == 0 and i in (0, 2): m = "s_mov_b32 exec_lo, 0xffffff00"
            if j == 3 and i == 3: m = "s_mov_b32 exec_hi, 0x00ffffff"
            e.wait(lg=f"or{i}")
            if m: e(m)
            e.vmem(f"buffer_store_dwordx4 {vr(ob+4*i,4)}, v{XU if i >= 2 else XL}, s[{sO}:{sO+3}], s{sTMP} offen {fl}", "st")
            if m: e("s_mov_b64 exec, -1")
        st.append((2, f))
    return st

def bar(e, cfg, n=None):
    e("s_barrier")
    if n: stamp(e, cfg, n)

def v2(cfg):
    l = layout(cfg); nd = l.ND
    fl = ["", "sc1", "sc0 sc1", "nt"][cfg.get("st", 1)]
    fl3 = ["", "sc1", "sc0 sc1", "nt"][cfg.get("st3", 1)]
    e = E(); setup(e, cfg)
    e(f"s_cmp_ge_u32 s{sWV}, 4"); e("s_cbranch_scc1 L_Q")
    P = e.fork(); P.sfx = "P"; P.tail = []; Q = e.fork(); Q.sfx = "Q"; Q.tail = []
    slots = [i * 4 * KB for i in range(8)] + [l.ringQ + i * 4 * KB for i in range(7)]
    NSL = len(slots)
    e = P
    addr_w1(e, l.ringP, nd); srds(e); prefetch(e)
    bar(e, cfg)
    for p in range(nd): w_dma(e, p, p * KB)
    dw_load(e); addr_main(e, l); addr_g2(e, l)
    stamp(e, cfg, 1)
    bar(e, cfg, 2)
    run(e, G1(e, l, [(0, 0)], w1_hook(e, nd, lambda: bar(e, cfg))))
    dw_prep(e)
    stamp(e, cfg, 3)
    run(e, V(e, l, 0, 0))
    bar(e, cfg, 4)
    run(e, G1(e, l, [(1, 1)])); e("s_nop 11")
    stamp(e, cfg, 5)
    run(e, V(e, l, 1, 1))
    addr_w2(e)
    e(f"v_add_u32 v{T1}, {l.ringQ}, v{WRD}")
    stamp(e, cfg, 6)
    bar(e, cfg, 7)
    def rd2(p):
        s = p % NSL
        if s < 8: w_read(e, p, slots[s], True)
        else: w_read(e, p, slots[s] - l.ringQ, True, T1)
    def h2(ks):
        if ks < NSL: w_dma(e, ks, slots[ks], True)
    run(e, G1(e, l, [(2, 0)], h2))
    nearly = 32 - NSL
    def h3(ks):
        todo = [p for p in range(nearly) if max(p // 2 + 1, (p * 14) // nearly + 1) == ks]
        prev = [p for p in range(nearly) if max(p // 2 + 1, (p * 14) // nearly + 1) == ks - 1]
        for p in todo: rd2(p)
        for p in prev:
            e.wait(lg=f"wr{p}"); w_dma(e, p + NSL, slots[p % NSL], True)
    run(e, G1(e, l, [(3, 1)], h3))
    stamp(e, cfg, 8)
    bar(e, cfg, 9)
    run(e, V(e, l, 2, 0)); run(e, V(e, l, 3, 1))
    addr_out(e, l)
    e.wait(lg="all")
    bar(e, cfg, 10)
    def h4(ks):
        for p in (nearly + 2 * ks, nearly + 2 * ks + 1):
            if p < 32: rd2(p)
        e.wait(lg=f"wr{2*ks+1}")
    run(e, G2(e, l, 0, 0, h4))
    run(e, merge(G2(e, l, 1, 1), EPI(e, l, 0, 0, fl)))
    bar(e, cfg, 11)
    run(e, merge(G2(e, l, 2, 0), EPI(e, l, 1, 1, fl)))
    bar(e, cfg, 12)
    run(e, merge(G2(e, l, 3, 1), EPI(e, l, 2, 0, fl)))
    e("s_nop 11")
    stamp(e, cfg, 13)
    run(e, EPI(e, l, 3, 1, fl3))
    finish(e, cfg, 14)
    e = Q
    addr_xsrc(e); srds(e)
    x_dma(e, l, 0)
    bar(e, cfg)
    dw_load(e)
    addr_w1(e, l.ringQ, nd); addr_main(e, l)
    stamp(e, cfg, 1)
    e.wait(vm="x0")
    bar(e, cfg, 2)
    dw_prep(e)
    bar(e, cfg, 3)
    x_dma(e, l, 1)
    for p in range(nd): w_dma(e, p, p * KB)
    e.wait(vm="x1")
    bar(e, cfg, 4)
    run(e, G1(e, l, [(0, 0), (1, 1)], w1_hook(e, nd, lambda: (x_dma(e, l, 2), x_dma(e, l, 3)))))
    e("s_nop 9")
    stamp(e, cfg, 5)
    run(e, V(e, l, 0, 0))
    stamp(e, cfg, 6)
    e.wait(vm="x3")
    bar(e, cfg, 7)
    run(e, V(e, l, 1, 1))
    stamp(e, cfg, 8)
    bar(e, cfg, 9)
    run(e, G1(e, l, [(2, 0), (3, 1)]))
    bar(e, cfg, 10)
    e("s_nop 7")
    run(e, V(e, l, 2, 0))
    v3 = V(e, l, 3, 1); k = cfg.get("split", 100)
    run(e, v3[:k])
    e.wait(lg="all")
    bar(e, cfg, 11)
    run(e, v3[k:])
    e.wait(lg="all")
    bar(e, cfg, 12)
    stamp(e, cfg, 13)
    finish(e, cfg, 14)
    return P, Q

def build(name, cfg):
    e = E(); setup(e, cfg)
    e(f"s_cmp_ge_u32 s{sWV}, 4"); e("s_cbranch_scc1 L_Q")
    P, Q = globals()[name](cfg)
    return wrap(e.text() + P.text() + "L_Q:\n" + Q.text() + "\n".join(P.tail + Q.tail) + "\n")

if __name__ == "__main__":
    cfg = {k: int(v) for k, v in (kv.split("=") for kv in sys.argv[3:])}
    open(sys.argv[2], "w").write(build(sys.argv[1], cfg))
```

```python
import sys
KN = "standalone__conformer_conv_module__speech_kernel"
HEAD = open("standalone__conformer_conv_module__speech.s.ref").read().split("; Override launch")[0]

XT = 16896
XB = 0
SB = 4 * XT
WB = SB + 2 * 16384
W1A, W1B, W2 = 0, 64, 128
A, Bq = 192, 208
F = 224
IW, CP, CN, CC, C0, C1 = 240, 241, 242, 243, 244, 245
XRD, SWR, SWR2, SRD_, VST, VSTEP = 246, 247, 248, 249, 250, 251
T0, T1, T2, T3 = 252, 253, 254, 255
sX, sW1, sW2, sO, sDW = 8, 12, 16, 20, 24
sWV, sC, sM, sWST, sTMP, sSLOW, sCOL = 3, 28, 29, 30, 31, 32, 33

class E:
    def __init__(s):
        s.l = []; s.vm = []; s.lg = []
    def __call__(s, t): s.l.append(t)
    def vmem(s, t, tag=None): s.l.append(t); s.vm.append(tag)
    def lds(s, t, tag=None): s.l.append(t); s.lg.append(tag)
    def _n(s, q, tag):
        idx = [i for i, x in enumerate(q) if x == tag]
        if not idx: return None
        return len(q) - 1 - idx[-1]
    def wait(s, vm=None, lg=None):
        p = []
        if vm is not None:
            n = 0 if vm == "all" else s._n(s.vm, vm)
            if n is not None and s.vm:
                assert n <= 63
                p.append(f"vmcnt({n})"); s.vm = s.vm[len(s.vm) - n:]
        if lg is not None:
            n = 0 if lg == "all" else s._n(s.lg, lg)
            if n is not None and s.lg:
                n = min(n, 15)
                p.append(f"lgkmcnt({n})"); s.lg = s.lg[len(s.lg) - n:]
        if p: s.l.append("s_waitcnt " + " ".join(p))
    def fork(s):
        e = E(); e.vm = list(s.vm); e.lg = list(s.lg); return e
    def text(s): return "\n".join(s.l) + "\n"

def vr(a, n): return f"v[{a}:{a+n-1}]"
def mfma(e, d, a, b, first):
    c = "0" if first else vr(d, 16)
    e(f"v_mfma_f32_32x32x16_bf16 {vr(d,16)}, {vr(a,4)}, {vr(b,4)}, {c}")

def srd(e, s, lo, hi, n):
    e(f"s_mov_b32 s{s}, {lo}"); e(f"s_mov_b32 s{s+1}, {hi}"); e(f"s_mov_b32 s{s+2}, {n}"); e(f"s_mov_b32 s{s+3}, 0x20000")

def stamp(e, cfg, i):
    if cfg.get("stamps"):
        e(f"{'s_memrealtime' if cfg.get('rt') else 's_memtime'} s[{60+2*i}:{61+2*i}]")

def setup(e, cfg):
    e("s_cmp_ge_u32 s2, 256"); e("s_cbranch_scc1 L_end")
    if cfg.get("stamps"):
        e("s_memrealtime s[56:57]")
    stamp(e, cfg, 0)
    e("s_load_dwordx8 s[36:43], s[0:1], 0")
    e("s_load_dwordx2 s[44:45], s[0:1], 32")
    if cfg.get("stamps"): e(f"s_load_dwordx2 s[46:47], s[0:1], {cfg['stamps']}")
    e(f"v_lshrrev_b32 v{T0}, 6, v0")
    e(f"v_and_b32 v{T3}, 63, v0")
    e(f"v_readfirstlane_b32 s{sWV}, v{T0}")
    e(f"s_and_b32 s4, s2, 127"); e("s_mul_i32 s4, s4, 125"); e(f"s_add_u32 s{sM}, s4, 63")
    e("s_lshr_b32 s5, s2, 7"); e("s_mul_i32 s5, s5, 8192000")
    e(f"s_mov_b32 s{sC}, 0xbfb8aa3b")
    e(f"s_lshl_b32 s{sCOL}, s{sWV}, 6")
    e(f"s_and_b32 s6, s{sWV}, 1"); e(f"s_lshr_b32 s7, s{sWV}, 1"); e("s_lshl_b32 s7, s7, 2")
    e(f"s_add_u32 s34, s{sM}, s7"); e(f"s_sub_u32 s35, s{sM}, s7"); e("s_sub_u32 s35, s35, 1")
    e("s_cmp_eq_u32 s6, 1"); e("s_cselect_b32 s34, s34, s35"); e("s_cselect_b32 s6, 1, -1"); e("s_lshl_b32 s6, s6, 9")
    e("s_lshl_b32 s34, s34, 9")
    e(f"v_lshrrev_b32 v{T0}, 5, v{T3}")
    e(f"v_and_b32 v{T1}, 31, v{T3}")
    e(f"v_xor_b32 v{T2}, v{T1}, v{T0}")
    e(f"v_lshlrev_b32 v{T2}, 4, v{T2}")
    e(f"v_mad_i32_i24 v{T2}, v{T0}, s6, v{T2}")
    e(f"v_add_u32 v{VSTEP}, s34, v{T2}")
    e(f"v_lshrrev_b32 v{T2}, 2, v{T3}"); e(f"v_and_b32 v{C1}, 3, v{T3}"); e(f"v_lshlrev_b32 v{C1}, 4, v{C1}")
    e(f"v_lshl_add_u32 v{C0}, v{T2}, 10, v{C1}"); e(f"v_lshl_add_u32 v{C1}, v{T2}, 9, v{C1}")
    e("s_waitcnt lgkmcnt(0)")
    e("s_add_u32 s36, s36, s5"); e("s_addc_u32 s37, s37, 0")
    e("s_add_u32 s44, s44, s5"); e("s_addc_u32 s45, s45, 0")
    srd(e, sX, "s36", "s37", 8192000); srd(e, sW1, "s38", "s39", 262144)
    srd(e, sW2, "s42", "s43", 131072); srd(e, sO, "s44", "s45", 8192000); srd(e, sDW, "s40", "s41", 1536)

def x_dma(e, j):
    for tt in range(2):
        e(f"s_mul_i32 s{sTMP}, s6, {16*j + 2*tt}")
        e(f"v_add_u32 v{T2}, s{sTMP}, v{VSTEP}")
        e(f"s_mul_i32 s{sTMP}, s{sWV}, 2112")
        e(f"s_add_u32 m0, s{sTMP}, {XB + j*XT + tt*1056}")
        e("s_nop 0")
        e.vmem(f"buffer_load_dwordx4 v{T2}, s[{sX}:{sX+3}], 0 offen lds", f"x{j}")

def w_piece(p):
    if p < 32:
        ks, ab = p // 2, p % 2
        return sW1, C0, ks * 16384 + ab * 512, (W1B if ab else W1A) + 4 * ks, SWR, 256
    ks = p - 32
    return sW2, C1, ks * 8192, W2 + 4 * ks, SWR2, 512

def w_dma(e, p, slot):
    s, va, so, _, _, _ = w_piece(p)
    e(f"s_add_u32 s{sTMP}, s{sCOL}, {so}")
    e(f"s_add_u32 m0, s{sWST}, {slot*1024}")
    e("s_nop 0")
    e.vmem(f"buffer_load_dwordx4 v{va}, s[{s}:{s+3}], s{sTMP} offen lds", f"w{p}")

def w_read(e, p, slot):
    _, _, _, d, ra, o2 = w_piece(p)
    e.lds(f"ds_read_b64_tr_b16 {vr(d,2)}, v{ra} offset:{slot*1024}", f"wr{p}")
    e.lds(f"ds_read_b64_tr_b16 {vr(d+2,2)}, v{ra} offset:{slot*1024+o2}", f"wr{p}")

def addr_w(e, nslots):
    e(f"s_mul_i32 s{sWST}, s{sWV}, {nslots*1024}"); e(f"s_add_u32 s{sWST}, s{sWST}, {WB}")
    e(f"v_bfe_u32 v{T0}, v{T3}, 2, 2")
    e(f"v_lshrrev_b32 v{T1}, 5, v{T3}")
    e(f"v_bfe_u32 v{T2}, v{T3}, 4, 1")
    e(f"v_lshlrev_b32 v{T2}, 5, v{T2}")
    e(f"v_lshl_add_u32 v{T2}, v{T0}, 6, v{T2}")
    e(f"v_add_u32 v{T2}, s{sWST}, v{T2}")
    e(f"v_lshl_add_u32 v{SWR}, v{T1}, 9, v{T2}")
    e(f"v_lshl_add_u32 v{SWR2}, v{T1}, 8, v{T2}")
    e(f"v_and_b32 v{T0}, 3, v{T3}")
    e(f"v_lshl_add_u32 v{SWR}, v{T0}, 3, v{SWR}")
    e(f"v_and_b32 v{T0}, 1, v{T3}")
    e(f"v_lshl_add_u32 v{SWR2}, v{T0}, 4, v{SWR2}")
    e(f"v_bfe_u32 v{T0}, v{T3}, 1, 1")
    e(f"v_lshl_add_u32 v{SWR2}, v{T0}, 3, v{SWR2}")

def addr_x(e):
    e(f"v_bfe_u32 v{T0}, v{T3}, 1, 4")
    e(f"v_mul_u32_u24 v{XRD}, 1056, v{T0}")
    e(f"v_and_b32 v{T0}, 1, v{T3}")
    e(f"v_lshl_add_u32 v{XRD}, v{T0}, 9, v{XRD}")
    e(f"v_lshrrev_b32 v{T1}, 5, v{T3}")
    e(f"v_xor_b32 v{T0}, v{T0}, v{T1}")
    e(f"v_lshl_add_u32 v{XRD}, v{T0}, 4, v{XRD}")

def addr_main(e):
    e(f"v_and_b32 v{T0}, 31, v{T3}")
    e(f"v_lshrrev_b32 v{T1}, 5, v{T3}")
    e(f"s_lshl_b32 s{sTMP}, s{sWV}, 11"); e(f"s_add_u32 s{sTMP}, s{sTMP}, {SB}")
    e(f"v_lshl_add_u32 v{SWR}, v{T0}, 6, s{sTMP}")
    e(f"v_bfe_u32 v{T2}, v{T3}, 1, 2")
    e(f"v_lshlrev_b32 v{SWR2}, 1, v{T1}")
    e(f"v_xor_b32 v{T2}, v{T2}, v{SWR2}")
    e(f"v_lshl_add_u32 v{SWR}, v{T2}, 4, v{SWR}")
    e(f"v_xor_b32 v{SWR2}, 16, v{SWR}")
    e(f"v_bfe_u32 v{T0}, v{T3}, 2, 2")
    e(f"v_lshl_add_u32 v{T0}, v{T1}, 2, v{T0}")
    e(f"v_lshlrev_b32 v{SRD_}, 6, v{T0}")
    e(f"v_lshrrev_b32 v{T0}, 1, v{T0}")
    e(f"v_bfe_u32 v{T2}, v{T3}, 4, 1")
    e(f"v_lshlrev_b32 v{T2}, 1, v{T2}")
    e(f"v_xor_b32 v{T0}, v{T0}, v{T2}")
    e(f"v_bfe_u32 v{T2}, v{T3}, 1, 1")
    e(f"v_xor_b32 v{T0}, v{T0}, v{T2}")
    e(f"v_lshl_add_u32 v{SRD_}, v{T0}, 4, v{SRD_}")
    e(f"v_and_b32 v{T0}, 1, v{T3}")
    e(f"v_lshl_add_u32 v{SRD_}, v{T0}, 3, v{SRD_}")
    e(f"v_add_u32 v{SRD_}, {SB}, v{SRD_}")
    e(f"v_bfe_u32 v{T2}, v{T3}, 4, 1")
    e(f"v_and_b32 v{T0}, 15, v{T3}")
    e(f"v_lshl_add_u32 v{VSTEP}, v{T2}, 1, -1")
    e(f"v_mul_i32_i24 v{T0}, v{T0}, v{VSTEP}")
    e(f"v_sub_u32 v{T0}, v{T0}, v{T2}")
    e(f"v_add_u32 v{T0}, s{sM}, v{T0}")
    e(f"v_lshl_add_u32 v{VST}, v{T0}, 9, s{sCOL}")
    e(f"v_lshl_add_u32 v{VST}, v{T1}, 4, v{VST}")
    e(f"v_lshlrev_b32 v{VSTEP}, 13, v{VSTEP}")

def dw_load(e):
    e(f"v_and_b32 v{T0}, 31, v{T3}"); e(f"v_lshlrev_b32 v{T0}, 1, v{T0}")
    for i, r in enumerate((CP, CC, CN)):
        e.vmem(f"buffer_load_ushort v{r}, v{T0}, s[{sDW}:{sDW+3}], s{sCOL} offen offset:{512*i}", "dw")

def dw_prep(e):
    e.wait(vm="dw")
    for r in (CP, CC, CN):
        e(f"v_lshlrev_b32 v{r}, 16, v{r}")
    e(f"v_cmp_gt_u32 vcc, 32, v{T3}")
    for r in (CP, CC, CN):
        e(f"v_mul_f32 v{r}, s{sC}, v{r}")
    e(f"v_cndmask_b32 v{T0}, v{CP}, v{CN}, vcc")
    e(f"v_cndmask_b32 v{CN}, v{CN}, v{CP}, vcc")
    e(f"v_mov_b32 v{CP}, v{T0}")
    e(f"v_max_f32 v{T0}, abs(v{CP}), abs(v{CN})")
    e(f"v_mul_f32 v{T0}, 0x30800000, v{T0}")
    e(f"v_max_f32 v{T0}, 0x2b800000, v{T0}")
    e(f"v_cmp_nge_f32 s[48:49], abs(v{CC}), v{T0}")
    e(f"v_mov_b32 v{T1}, 0x53800000")
    e(f"v_cmp_nle_f32 s[50:51], abs(v{CC}), v{T1}")
    e(f"v_rcp_f32 v{T0}, v{CC}")
    e(f"v_mov_b32 v{IW}, 1.0")
    e("s_nop 2")
    e("s_or_b64 s[48:49], s[48:49], s[50:51]")
    e(f"s_cselect_b32 s{sSLOW}, 1, 0")
    e("s_cbranch_scc1 L_dwdone%s" % e.sfx)
    e(f"v_mov_b32 v{IW}, v{T0}")
    e(f"v_mul_f32 v{CP}, v{CP}, v{T0}")
    e(f"v_mul_f32 v{CN}, v{CN}, v{T0}")
    e("L_dwdone%s:" % e.sfx)

def x_read(e, j, ks):
    e.lds(f"ds_read_b128 {vr(F+4*(ks%4),4)}, v{XRD} offset:{XB + j*XT + 32*ks}", f"xf{ks}")

def G1(e, j, pre=None):
    for ks in range(3): x_read(e, j, ks)
    for ks in range(16):
        if ks + 3 < 16: x_read(e, j, ks + 3)
        if pre: pre(ks)
        e.wait(lg=f"xf{ks}")
        f = F + 4 * (ks % 4)
        mfma(e, Bq, f, W1B + 4 * ks, ks == 0)
        mfma(e, A, f, W1A + 4 * ks, ks == 0)

def s_read(e, j, ks):
    f = F + 4 * (ks % 4); o = (j % 2) * 16384 + ks * 1024
    e.lds(f"ds_read_b64_tr_b16 {vr(f,2)}, v{SRD_} offset:{o}", f"sf{ks}")
    e.lds(f"ds_read_b64_tr_b16 {vr(f+2,2)}, v{SRD_} offset:{o+512}", f"sf{ks}")

def G2(e, j):
    for ks in range(3): s_read(e, j, ks)
    for ks in range(16):
        if ks + 3 < 16: s_read(e, j, ks + 3)
        e.wait(lg=f"sf{ks}")
        mfma(e, A, W2 + 4 * ks, F + 4 * (ks % 4), ks == 0)
    e("s_nop 11")
    for i in range(8):
        e(f"v_cvt_pk_bf16_f32 v{A+i}, v{A+2*i}, v{A+2*i+1}")
    if j == 0: e("s_mov_b32 exec_lo, 0xfffefffe"); e("s_mov_b32 exec_hi, 0xfffefffe")
    if j == 3: e("s_mov_b32 exec_lo, 0x7fffffff"); e("s_mov_b32 exec_hi, 0x7fffffff")
    e.vmem(f"buffer_store_dwordx4 {vr(A,4)}, v{VST}, s[{sO}:{sO+3}], 0 offen", "st")
    e.vmem(f"buffer_store_dwordx4 {vr(A+4,4)}, v{VST}, s[{sO}:{sO+3}], 0 offen offset:32", "st")
    if j in (0, 3): e("s_mov_b64 exec, -1")
    if j < 3: e(f"v_add_u32 v{VST}, v{VST}, v{VSTEP}")
    e("s_nop 1")

def V(e, j):
    R = range(16)
    e("s_nop 7")
    for r in R: e(f"v_mul_f32 v{Bq+r}, s{sC}, v{Bq+r}")
    for r in R: e(f"v_exp_f32 v{Bq+r}, v{Bq+r}")
    for r in R: e(f"v_fma_f32 v{Bq+r}, v{Bq+r}, v{IW}, v{IW}")
    for r in R: e(f"v_rcp_f32 v{Bq+r}, v{Bq+r}")
    for r in R: e(f"v_mul_f32 v{A+r}, v{A+r}, v{Bq+r}")
    if j == 0:
        e(f"v_mov_b32 v{C0}, v{A}"); e(f"v_mov_b32 v{C1}, v{A}")
        e(f"v_cmp_gt_u32 vcc, 32, v{T3}"); e("s_nop 1")
        e(f"v_permlane32_swap_b32 v{C0}, v{C1}"); e("s_nop 1")
        e(f"v_cndmask_b32 v{C1}, v{C0}, v{C1}, vcc")
    g = lambda r: A + r if r >= 0 else (C1 if r == -1 else C0)
    l = f"{e.sfx}_{j}"
    e(f"s_cmp_eq_u32 s{sSLOW}, 0"); e(f"s_cbranch_scc1 L_fast{l}")
    for r in R: e(f"v_mul_f32 v{Bq+r}, v{CC}, v{g(r-1)}")
    for r in R: e(f"v_fmac_f32 v{Bq+r}, v{CN}, v{g(r)}")
    e(f"s_branch L_join{l}")
    e(f"L_fast{l}:")
    for r in R: e(f"v_fma_f32 v{Bq+r}, v{CN}, v{g(r)}, v{g(r-1)}")
    e(f"L_join{l}:")
    for r in R: e(f"v_fmac_f32 v{Bq+r}, v{CP}, v{g(r-2)}")
    if j < 3:
        e(f"v_mov_b32 v{C0}, v{A+14}"); e(f"v_mov_b32 v{C1}, v{A+15}")
    for r in R: e(f"v_exp_f32 v{A+r}, v{Bq+r}")
    for r in R: e(f"v_fma_f32 v{A+r}, v{A+r}, s{sC}, s{sC}")
    for r in R: e(f"v_rcp_f32 v{A+r}, v{A+r}")
    for r in R: e(f"v_mul_f32 v{Bq+r}, v{Bq+r}, v{A+r}")
    for i in range(8): e(f"v_cvt_pk_bf16_f32 v{A+i}, v{Bq+2*i}, v{Bq+2*i+1}")
    o = (j % 2) * 16384
    e.lds(f"ds_write_b128 v{SWR}, {vr(A,4)} offset:{o}", "sw")
    e.lds(f"ds_write_b128 v{SWR2}, {vr(A+4,4)} offset:{o}", "sw")
    e.wait(lg="all")

def finish(e, cfg, n):
    if "spin" in cfg:
        e("s_waitcnt vmcnt(0)")
        stamp(e, cfg, n)
        e("s_waitcnt lgkmcnt(0)")
        if e.sfx == "PQ"[cfg.get("spinq", 0)]:
            e(f"s_add_u32 s4, s{60+2*cfg['spin']}, 4000")
            e(f"L_spin{e.sfx}:"); e("s_sleep 1"); e("s_memrealtime s[6:7]"); e("s_waitcnt lgkmcnt(0)")
            e("s_sub_u32 s6, s6, s4"); e("s_cmp_lt_i32 s6, 0"); e(f"s_cbranch_scc1 L_spin{e.sfx}")
        e("s_endpgm")
        return
    if cfg.get("stamps"):
        e("s_waitcnt vmcnt(0)")
        stamp(e, cfg, n)
        e("s_memrealtime s[58:59]"); e("s_waitcnt lgkmcnt(0)")
        if cfg["stamps"] == 48:
            e(f"s_lshl_b32 s4, s2, 3"); e(f"s_add_u32 s4, s4, s{sWV}"); e("s_lshl_b32 s4, s4, 6")
        else:
            e(f"s_cmp_lg_u32 s2, {cfg.get('dbgwg', 0)}"); e("s_cbranch_scc1 L_end")
            e(f"s_cmp_lg_u32 s{sWV}, {cfg.get('dbgwave', 0)}"); e("s_cbranch_scc1 L_end"); e("s_mov_b32 s4, 0")
        e("v_mov_b32 v0, s4")
        e("v_mov_b32 v1, s56"); e("global_store_dword v0, v1, s[46:47]")
        e("v_mov_b32 v1, s58"); e("global_store_dword v0, v1, s[46:47] offset:4")
        for i in range(1, n + 1):
            e(f"s_sub_u32 s4, s{60+2*i}, s60"); e("v_mov_b32 v1, s4"); e(f"global_store_dword v0, v1, s[46:47] offset:{4+4*i}")
    e("s_endpgm")

def wrap(body, lds=163840):
    return (HEAD + f"; @launch grid=(256,1,1) block=(512,1,1) lds={lds}\n"
      + f'.amdgcn_target "amdgcn-amd-amdhsa--gfx950"\n.text\n.globl {KN}\n.p2align 8\n.type {KN},@function\n{KN}:\n'
      + body + "L_end:\ns_endpgm\n"
      + f'.section .rodata,"a"\n.p2align 6\n.amdhsa_kernel {KN}\n  .amdhsa_next_free_vgpr 256\n  .amdhsa_next_free_sgpr 102\n'
      + "  .amdhsa_accum_offset 256\n  .amdhsa_group_segment_fixed_size 0\n  .amdhsa_kernarg_size 56\n  .amdhsa_user_sgpr_count 2\n"
      + "  .amdhsa_user_sgpr_kernarg_segment_ptr 1\n  .amdhsa_system_sgpr_workgroup_id_x 1\n.end_amdhsa_kernel\n")

def v1(cfg):
    e = E(); e.sfx = ""
    NS = 7
    setup(e, cfg)
    x_dma(e, 0)
    addr_w(e, NS)
    for p in range(NS): w_dma(e, p, p)
    dw_load(e)
    addr_x(e)
    stamp(e, cfg, 1)
    xat = {8: 1, 20: 2, 32: 3}
    for p in range(48):
        e.wait(vm=f"w{p}")
        w_read(e, p, p % NS)
        if p >= 1 and p - 1 + NS < 48:
            e.wait(lg=f"wr{p-1}")
            w_dma(e, p - 1 + NS, (p - 1) % NS)
        if p in xat: x_dma(e, xat[p])
        if p == 0: stamp(e, cfg, 2)
    dw_prep(e)
    e.wait(vm="all", lg="all")
    addr_main(e)
    stamp(e, cfg, 3)
    e("s_barrier")
    stamp(e, cfg, 4)
    e(f"s_cmp_ge_u32 s{sWV}, 4"); e("s_cbranch_scc1 L_Q")
    P = e.fork(); P.sfx = "P"; Q = e.fork(); Q.sfx = "Q"
    schedP = [["G1 0"], ["V 0"], ["G1 1"], ["V 1"], ["G2 0", "G1 2"], ["V 2"], ["G2 1", "G1 3"], ["V 3"], ["G2 2"], ["G2 3"]]
    schedQ = [[], ["G1 0"], ["V 0"], ["G2 0", "G1 1"], ["V 1"], ["G2 1", "G1 2"], ["V 2"], ["G2 2", "G1 3"], ["V 3"], ["G2 3"]]
    for w, sched in ((P, schedP), (Q, schedQ)):
        for si, slot in enumerate(sched):
            for op in slot:
                n, j = op.split(); j = int(j)
                if cfg.get("prio"): w(f"s_setprio {0 if n == 'V' else 1}")
                {"G1": G1, "G2": G2, "V": V}[n](w, j)
            if si < 9:
                w("s_barrier")
                stamp(w, cfg, 5 + si)
        finish(w, cfg, 14)
    return wrap(e.text() + P.text() + "L_Q:\n" + Q.text())

if __name__ == "__main__":
    cfg = dict(kv.split("=") for kv in sys.argv[3:])
    cfg = {k: int(v) for k, v in cfg.items()}
    open(sys.argv[2], "w").write(globals()[sys.argv[1]](cfg))
```
